```python
import torch

def _softmax(x, axis=-1):
    return torch.softmax(x, dim=axis)
def _gelu(x):
    return torch.nn.functional.gelu(x, approximate="tanh")
def _silu(x):
    return torch.nn.functional.silu(x)
def _sigmoid(x):
    return torch.sigmoid(x)
def _layernorm(x, axis=-1, eps=1e-5):
    m = x.mean(dim=axis, keepdim=True)
    v = x.var(dim=axis, keepdim=True, unbiased=False)
    return (x - m) / torch.sqrt(v + eps)
def _scatter_add(tgt, idx, src, axis=0):
    return tgt.clone().index_add_(axis, idx, src)
def _segment_sum(src, seg, n):
    out = torch.zeros((n,) + src.shape[1:], dtype=src.dtype)
    return out.index_add_(0, seg, src)
def _pad(x, pw):
    flat = tuple(v for pair in reversed(pw) for v in pair)
    return torch.nn.functional.pad(x, flat)

kernel_name = 'concat_heads__mha_block__ssm_conv_s4d__prompt'

def setup_inputs():

    _w = (lambda a: (lambda t: t.to(torch.bfloat16) if t.is_floating_point() else t)(torch.as_tensor(a)))
    def _A_setup():
        B, S, D, H = 1, 2048, 640, 32
        return {
            "x": _w((lambda *s: torch.randn(*s, dtype=torch.bfloat16) * 0.2)(B, S, D)),
            "wqkv": _w((lambda *s: torch.randn(*s, dtype=torch.bfloat16) * 0.2)(D, 3 * D)),
            "wo": _w((lambda *s: torch.randn(*s, dtype=torch.bfloat16) * 0.05)(D, D)),
        }
    _A_in = _A_setup()

    def _B_setup():
        Bsz, L, D, N = 1, 2048, 640, 128
        return {
            "u": _w((lambda *s: torch.randn(*s, dtype=torch.bfloat16) * 0.05)(Bsz, L, D)),
            "log_A_real": _w((lambda *s: torch.randn(*s, dtype=torch.bfloat16) * 6.4)(D, N) * 0.5),
            "A_imag": _w((lambda *s: torch.randn(*s, dtype=torch.bfloat16) * 0.1)(D, N) * 3.14),
            "C_real": _w((lambda *s: torch.randn(*s, dtype=torch.bfloat16) * 0.8)(D, N) / N ** 0.5),
            "C_imag": _w((lambda *s: torch.randn(*s, dtype=torch.bfloat16) * 0.8)(D, N) / N ** 0.5),
            "log_dt": _w((lambda *s: torch.randn(*s, dtype=torch.bfloat16) * 0.1)(D) * 0.5 - 4.0),
            "D_skip": _w((lambda *s: torch.randn(*s, dtype=torch.bfloat16) * 0.1)(D)),
        }
    _B_in = _B_setup()

    return {
        "A_x": _A_in["x"],
        "A_wqkv": _A_in["wqkv"],
        "A_wo": _A_in["wo"],
        "B_u": _B_in["u"],
        "B_log_A_real": _B_in["log_A_real"],
        "B_A_imag": _B_in["A_imag"],
        "B_C_real": _B_in["C_real"],
        "B_C_imag": _B_in["C_imag"],
        "B_log_dt": _B_in["log_dt"],
        "B_D_skip": _B_in["D_skip"],
    }

def reference(A_x, A_wqkv, A_wo, B_u, B_log_A_real, B_A_imag, B_C_real, B_C_imag, B_log_dt, B_D_skip):
    def _A_ref(x, wqkv, wo):
        B, S, D = x.shape
        H = 32
        Dh = D // H
        qkv = (lambda x, *d: x.permute(*d))((x @ wqkv).reshape(B, S, 3, H, Dh), 2, 0, 3, 1, 4)
        q, k, v = qkv[0], qkv[1], qkv[2]
        scores = torch.einsum("bhqd,bhkd->bhqk", q, k) * (Dh ** -0.5)
        p = _softmax(scores, axis=-1)
        o = torch.einsum("bhqk,bhkd->bhqd", p, v)
        return (lambda x, *d: x.permute(*d))(o, 0, 2, 1, 3).reshape(B, S, D) @ wo

    def _B_ref(u, log_A_real, A_imag, C_real, C_imag, log_dt, D_skip):
        L = u.shape[1]
        dt = torch.exp(log_dt)
        A = -torch.exp(log_A_real) + 1j * A_imag
        C = (C_real + 1j * C_imag) * dt[:, None]
        pos = (lambda x, dt: x.to(dt))(torch.arange(L), log_dt.dtype)
        P = torch.exp((A * dt[:, None])[:, :, None] * pos[None, None, :])
        K = 2.0 * torch.einsum("dn,dnl->dl", C, P).real
        L2 = 2 * L
        u_t = (lambda x, *d: x.permute(*d))(u, 0, 2, 1)
        Kf = (lambda x, *a, **k: torch.fft.rfft(x.float(), *a, **k))(K, L2)
        Uf = (lambda x, *a, **k: torch.fft.rfft(x.float(), *a, **k))(u_t, L2)
        y = (lambda x, *a, **k: torch.fft.irfft(x, *a, **k).to(torch.bfloat16))(Uf * Kf[None, :, :], L2)[:, :, :L]
        y = (lambda x, *d: x.permute(*d))(y, 0, 2, 1)
        return y + u * D_skip[None, None, :]

    a = _A_ref(A_x, A_wqkv, A_wo)
    b = _B_ref(B_u, B_log_A_real, B_A_imag, B_C_real, B_C_imag, B_log_dt, B_D_skip)
    return torch.concatenate([a, b], axis=-1)
```

```python
class Asm:
    def __init__(self):
        self.lines = []
        self._lbl = 0
    def __call__(self, s, *a):
        if a: s = s % a
        self.lines.append("    " + s)
    def label(self, name):
        self.lines.append(name + ":")
    def raw(self, s):
        self.lines.append(s)
    def c(self, s):
        self.lines.append("    ; " + s)
    def newlabel(self, base="L"):
        self._lbl += 1
        return "%s_%d" % (base, self._lbl)
    def text(self):
        return "\n".join(self.lines) + "\n"

def vr(b, n=1):
    return "v%d" % b if n == 1 else "v[%d:%d]" % (b, b + n - 1)
def sr(b, n=1):
    return "s%d" % b if n == 1 else "s[%d:%d]" % (b, b + n - 1)

import struct
def f2u(f):
    return struct.unpack("<I", struct.pack("<f", f))[0]

class VAlloc:
    def __init__(self, start=1):
        self.n = start
    def __call__(self, cnt=1, align=None):
        if align is None:
            align = 1 if cnt == 1 else (2 if cnt == 2 else 4)
        self.n = (self.n + align - 1) // align * align
        b = self.n
        self.n += cnt
        return b

def kernel_begin(a, name):
    a.raw(".text")
    a.raw(".globl %s" % name)
    a.raw(".p2align 8")
    a.raw(".type %s,@function" % name)
    a.label(name)

def kernel_desc(a, name, nvgpr, nsgpr=96):
    nv = (nvgpr + 3) // 4 * 4
    a.raw('.section .rodata,"a"')
    a.raw(".p2align 6")
    a.raw(".amdhsa_kernel %s" % name)
    a.raw("  .amdhsa_next_free_vgpr %d" % nv)
    a.raw("  .amdhsa_next_free_sgpr %d" % nsgpr)
    a.raw("  .amdhsa_accum_offset %d" % nv)
    a.raw("  .amdhsa_group_segment_fixed_size 0")
    a.raw("  .amdhsa_kernarg_size 104")
    a.raw("  .amdhsa_user_sgpr_count 2")
    a.raw("  .amdhsa_user_sgpr_kernarg_segment_ptr 1")
    a.raw("  .amdhsa_system_sgpr_workgroup_id_x 1")
    a.raw(".end_amdhsa_kernel")

def srd(a, d, ptr, nbytes):
    a("s_mov_b32 s%d, s%d", d, ptr)
    a("s_and_b32 s%d, s%d, 0xffff", d + 1, ptr + 1)
    a("s_mov_b32 s%d, 0x%x", d + 2, nbytes)
    a("s_mov_b32 s%d, 0x00020000", d + 3)
```

```python
from asmlib import *
import math
QF_OFF = 0x000000
KV_OFF = 0x280000
OF_OFF = 0x780000
KT_OFF = 0xA00000
UP_OFF = 0xB00000
WS_BYTES = 0x1000000
KT_STRIDE = 1536
LOG2E = math.log2(math.e)
QSCALE = LOG2E / math.sqrt(20.0)
MF16 = "v_mfma_f32_32x32x16_bf16"
MF8 = "v_mfma_f32_32x32x8_bf16"

def interleave(*lists):
    out = []
    lists = [list(l) for l in lists]
    while any(lists):
        for l in lists:
            if l: out.append(l.pop(0))
    return out
```

```python
from gen_common import *

K1_SLOT = 36864
K1_LDS = 4 * K1_SLOT

def gen_k1(a):
    name = "k1_qkv_kernel"
    kernel_begin(a, name)
    a("s_cmp_ge_u32 s2, 256")
    a("s_cbranch_scc1 K1_END")
    a("s_load_dwordx16 s[36:51], s[0:1], 0")
    a("s_load_dwordx4 s[52:55], s[0:1], 64")
    a("s_load_dwordx2 s[56:57], s[0:1], 96")
    a("v_lshrrev_b32 v1, 6, v0")
    a("v_and_b32 v0, 63, v0")
    a("v_readfirstlane_b32 s3, v1")
    a("s_and_b32 s4, s2, 7")
    a("s_lshr_b32 s5, s2, 3")
    a("s_waitcnt lgkmcnt(0)")
    srd(a, 8, 36, 2048 * 640 * 2)
    srd(a, 12, 38, 640 * 1920 * 2)
    srd(a, 16, 56, WS_BYTES)
    srd(a, 20, 42, 2048 * 640 * 2)
    a("s_cmp_ge_u32 s5, 24")
    a("s_cbranch_scc1 K1_SSM")
    a("s_lshr_b32 s6, s4, 1")
    a("s_lshl_b32 s6, s6, 2")
    a("s_and_b32 s7, s5, 3")
    a("s_add_u32 s6, s6, s7")
    a("s_and_b32 s7, s4, 1")
    a("s_mul_i32 s7, s7, 6")
    a("s_lshr_b32 s24, s5, 2")
    a("s_add_u32 s7, s7, s24")
    a("s_cmp_lt_u32 s3, 4")
    a("s_cbranch_scc1 K1_COMPUTE")
    a("s_sub_u32 s3, s3, 4")
    a("v_lshrrev_b32 v10, 3, v0")
    a("s_lshl_b32 s24, s6, 7")
    a("s_lshl_b32 s25, s3, 5")
    a("s_add_u32 s24, s24, s25")
    a("v_add_u32 v10, s24, v10")
    a("v_mul_u32_u24 v10, 1280, v10")
    a("v_and_b32 v11, 7, v0")
    a("v_lshrrev_b32 v12, 4, v0")
    a("v_xor_b32 v13, v11, v12")
    a("v_xor_b32 v14, 4, v13")
    a("v_lshl_add_u32 v2, v13, 4, v10")
    a("v_lshl_add_u32 v3, v14, 4, v10")
    a("v_add_u32 v3, %d, v3", 8 * 1280)
    a("v_add_u32 v4, %d, v2", 16 * 1280)
    a("v_add_u32 v5, %d, v3", 16 * 1280)
    wv = [6, 7, 8, 9, 15]
    a("s_mul_i32 s24, s7, 320")
    a("s_mul_i32 s25, s3, %d", 16 * 3840)
    a("s_add_u32 s24, s24, s25")
    for i in range(5):
        a("v_add_u32 v10, %d, v0", 64 * i)
        a("v_mul_u32_u24 v11, 3277, v10")
        a("v_lshrrev_b32 v11, 16, v11")
        a("v_mul_u32_u24 v12, 20, v11")
        a("v_sub_u32 v12, v10, v12")
        a("v_mul_u32_u24 v11, 3840, v11")
        a("v_lshl_add_u32 v11, v12, 4, v11")
        a("v_add_u32 v%d, s24, v11", wv[i])
    a("s_lshl_b32 s26, s3, 12")
    a("s_mul_i32 s27, s3, 5120")
    a("s_add_u32 s27, s27, 16384")
    def issue(s):
        slot = (s % 4) * K1_SLOT
        a("s_mov_b32 s28, %d", s * 128)
        a("s_mov_b32 s29, %d", s * 64 * 3840)
        for i in range(5):
            a("s_add_u32 m0, s27, %d", slot + i * 1024)
            a("s_nop 0")
            a("buffer_load_dwordx4 v%d, s[12:15], s29 offen lds", wv[i])
            if i < 4:
                a("s_add_u32 m0, s26, %d", slot + i * 1024)
                a("s_nop 0")
                a("buffer_load_dwordx4 v%d, s[8:11], s28 offen lds", 2 + i)
    for s in range(4): issue(s)
    issued = 4
    for s in range(10):
        a("s_waitcnt vmcnt(%d)", 9 * (issued - 1 - s))
        a("s_barrier")
        if s >= 1 and issued < 10:
            issue(issued); issued += 1
    a("s_endpgm")
    a.label("K1_COMPUTE")
    ACC = 16
    FR = [96, 120]
    aX = [2, 3, 4, 5]; aW = 6; aW4 = 7
    a("v_and_b32 v8, 31, v0")
    a("v_lshrrev_b32 v9, 5, v0")
    a("v_bfe_u32 v10, v0, 1, 3")
    a("v_xor_b32 v10, v10, v9")
    a("v_lshlrev_b32 v10, 4, v10")
    a("v_lshl_add_u32 v10, v8, 7, v10")
    a("s_lshl_b32 s24, s3, 12")
    a("v_add_u32 v2, s24, v10")
    for st in range(1, 4):
        a("v_xor_b32 v%d, %d, v2", aX[st], st * 32)
    a("v_bfe_u32 v10, v0, 2, 2")
    a("v_lshl_add_u32 v10, v9, 3, v10")
    a("v_mul_u32_u24 v10, 320, v10")
    a("v_and_b32 v11, 3, v0")
    a("v_bfe_u32 v12, v0, 4, 1")
    a("s_lshl_b32 s30, s6, 2")
    a("s_add_u32 s30, s30, s3")
    a("s_and_b32 s31, s7, 3")
    a("s_cmp_ge_u32 s7, 8")
    a("s_cbranch_scc1 K1_VTYPE")

    def mainloop(vtype):
        def reads(t):
            st = t % 4
            f = FR[t % 2]
            L = ["ds_read_b128 %s, v%d" % (vr(f, 4), aX[st])]
            for tau in range(5):
                for z in range(2):
                    if vtype:
                        off = 16384 + st * 5120 + z * 1280 + tau * 64; ad = aW
                    elif tau < 4:
                        off = 16384 + st * 5120 + z * 1280 + tau * 80; ad = aW
                    else:
                        off = 16384 + st * 5120 + z * 1280; ad = aW4
                    L.append("ds_read_b64_tr_b16 %s, v%d offset:%d" % (vr(f + 4 + 4 * tau + 2 * z, 2), ad, off))
            return L
        def adv(s):
            d = K1_SLOT if s % 4 else -3 * K1_SLOT
            regs_ = aX + [aW] + ([] if vtype else [aW4])
            return ["v_add_u32 v%d, 0x%x, v%d" % (r, d & 0xffffffff, r) for r in regs_]
        a("s_barrier")
        for l in reads(0): a(l)
        for t in range(40):
            a("s_waitcnt lgkmcnt(0)")
            nxt = []
            if t + 1 < 40:
                if (t + 1) % 4 == 0:
                    a("s_barrier")
                    for l in adv((t + 1) // 4): a(l)
                nxt = reads(t + 1)
            f = FR[t % 2]
            for tau in range(5):
                acc = vr(ACC + 16 * tau, 16)
                c = "0" if t == 0 else acc
                xf = vr(f, 4); wf = vr(f + 4 + 4 * tau, 4)
                if vtype: a("%s %s, %s, %s, %s" % (MF16, acc, xf, wf, c))
                else: a("%s %s, %s, %s, %s" % (MF16, acc, wf, xf, c))
                k = 3 if tau == 0 else 2
                for l in nxt[:k]: a(l)
                nxt = nxt[k:]
    a("v_mul_u32_u24 v13, 40, v12")
    a("v_lshl_add_u32 v13, v11, 3, v13")
    a("v_add_u32 v%d, v10, v13", aW)
    a("v_lshl_add_u32 v13, v12, 2, v11")
    a("v_mul_u32_u24 v13, 40, v13")
    a("v_add3_u32 v%d, v10, v13, 32", aW4)
    mainloop(False)
    a("s_cmp_lt_u32 s7, 4")
    a("s_cselect_b32 s24, 1, 2")
    a("s_mul_i32 s25, s24, 1280")
    a("s_mul_i32 s24, s24, 81920")
    a("s_cselect_b32 s26, %d, %d", QF_OFF, KV_OFF)
    a("s_cselect_b32 s32, 0x%x, 1.0", f2u(QSCALE))
    a("s_mov_b32 s33, s32")
    a("s_mul_i32 s27, s31, s24")
    a("s_lshl_b32 s27, s27, 3")
    a("s_add_u32 s26, s26, s27")
    a("s_mul_i32 s27, s30, s25")
    a("s_add_u32 s26, s26, s27")
    a("v_lshlrev_b32 v2, 4, v0")
    a("v_mul_lo_u32 v3, v9, s24")
    a("v_lshl_add_u32 v3, v8, 3, v3")
    a("s_mov_b32 s27, s26")
    T = 96
    for tau in range(5):
        acc = ACC + 16 * tau
        for i in range(8):
            a("v_pk_mul_f32 %s, %s, s[32:33]" % (vr(acc + 2 * i, 2), vr(acc + 2 * i, 2)))
        t = T + 8 * tau
        for i in range(8):
            a("v_cvt_pk_bf16_f32 v%d, v%d, v%d", t + i, acc + 2 * i, acc + 2 * i + 1)
        if tau < 4:
            a("buffer_store_dwordx4 %s, v2, s[16:19], s27 offen" % vr(t, 4))
            a("s_add_u32 s27, s27, s24")
            a("buffer_store_dwordx4 %s, v2, s[16:19], s27 offen" % vr(t + 4, 4))
            a("s_add_u32 s27, s27, s24")
        else:
            a("s_lshl_b32 s24, s24, 1")
            for g in range(4):
                a("buffer_store_dwordx2 %s, v3, s[16:19], s26 offen offset:1024" % vr(t + 2 * g, 2))
                a("s_add_u32 s26, s26, s24")
    a("s_endpgm")
    a.label("K1_VTYPE")
    a("v_lshlrev_b32 v13, 5, v12")
    a("v_lshl_add_u32 v13, v11, 3, v13")
    a("v_add_u32 v%d, v10, v13", aW)
    mainloop(True)
    a("s_mul_i32 s26, s31, %d", 8 * 163840)
    a("s_mul_i32 s27, s30, 2560")
    a("s_add_u32 s26, s26, s27")
    a("s_add_u32 s26, s26, %d", KV_OFF + 1280)
    a("s_mov_b32 s24, 163840")
    a("v_mul_u32_u24 v9, 320, v9")
    for tau in range(5):
        a("v_add_u32 v10, %d, v8", 32 * tau)
        a("v_mul_u32_u24 v11, 3277, v10")
        a("v_lshrrev_b32 v11, 16, v11")
        a("v_mul_u32_u24 v12, 20, v11")
        a("v_sub_u32 v12, v10, v12")
        a("v_mul_lo_u32 v11, v11, s24")
        a("v_lshl_add_u32 v12, v12, 4, v9")
        a("v_add_u32 v%d, v11, v12", 2 + tau)
    for tau in range(5):
        acc = ACC + 16 * tau
        t = T + 8 * tau
        for i in range(8):
            a("v_cvt_pk_bf16_f32 v%d, v%d, v%d", t + i, acc + 2 * i, acc + 2 * i + 1)
        a("buffer_store_dwordx4 %s, v%d, s[16:19], s26 offen" % (vr(t, 4), 2 + tau))
        a("buffer_store_dwordx4 %s, v%d, s[16:19], s26 offen offset:640" % (vr(t + 4, 4), 2 + tau))
    a("s_endpgm")
    gen_k1_ssm(a)
    a.label("K1_END")
    a("s_endpgm")
    kernel_desc(a, name, 144)
    return name

def cmul(r, x, y, t):
    return ["v_pk_mul_f32 %s, %s, %s op_sel:[0,0] op_sel_hi:[1,0]" % (vr(t, 2), vr(x, 2), vr(y, 2)),
            "v_pk_fma_f32 %s, %s, %s, %s op_sel:[1,1,0] op_sel_hi:[0,1,1] neg_lo:[1,0,0]" % (vr(r, 2), vr(x, 2), vr(y, 2), vr(t, 2))]

def gen_k1_ssm(a):
    a.label("K1_SSM")
    RS = 272
    a("s_sub_u32 s5, s5, 24")
    a("s_lshl_b32 s5, s5, 3")
    a("s_add_u32 s5, s5, s4")
    a("s_mul_i32 s6, s3, 18432")
    a("s_mul_i32 s24, s5, %d", 32 * 1280)
    a("s_mul_i32 s25, s3, 160")
    a("s_add_u32 s24, s24, s25")
    for i in range(5):
        a("v_add_u32 v10, %d, v0", 64 * i)
        a("v_mul_u32_u24 v11, 6554, v10")
        a("v_lshrrev_b32 v11, 16, v11")
        a("v_mul_u32_u24 v12, 10, v11")
        a("v_sub_u32 v12, v10, v12")
        a("v_mul_u32_u24 v11, 1280, v11")
        a("v_lshl_add_u32 v11, v12, 4, v11")
        a("s_add_u32 m0, s6, %d", i * 1024)
        a("s_nop 0")
        a("buffer_load_dwordx4 v11, s[20:23], s24 offen lds")
    a("s_mul_i32 s7, s5, 10")
    a("s_add_u32 s7, s7, s3")
    a("s_mov_b32 s34, 0")
    IN = 16
    DT = 24; DSK = 25
    def load_params():
        a("s_lshl_b32 s24, s7, 8")
        a("v_lshl_add_u32 v10, v0, 1, s24")
        for k, sp in enumerate((44, 46, 48, 50)):
            a("global_load_ushort v%d, v10, s[%d:%d]", IN + 2 * k, sp, sp + 1)
            a("global_load_ushort v%d, v10, s[%d:%d] offset:128", IN + 2 * k + 1, sp, sp + 1)
        a("s_lshl_b32 s24, s7, 1")
        a("v_mov_b32 v10, s24")
        a("global_load_ushort v%d, v10, s[52:53]", DT)
        a("global_load_ushort v%d, v10, s[54:55]", DSK)
    load_params()
    a("v_lshrrev_b32 v10, 4, v0")
    a("v_bfe_u32 v11, v0, 2, 2")
    a("v_lshlrev_b32 v11, 2, v11")
    a("v_sub_u32 v11, v10, v11")
    a("v_add_u32 v11, 12, v11")
    a("v_mul_u32_u24 v11, 160, v11")
    a("v_and_b32 v12, 3, v0")
    a("v_lshl_add_u32 v11, v12, 3, v11")
    a("v_add_u32 v11, s6, v11")
    a("v_and_b32 v12, 15, v0")
    a("v_lshlrev_b32 v12, 12, v12")
    a("v_lshl_add_u32 v12, v10, 4, v12")
    a("s_mul_i32 s24, s3, %d", 80 * 4096)
    a("s_lshl_b32 s25, s5, 6")
    a("s_add_u32 s24, s24, s25")
    a("s_add_u32 s24, s24, %d", UP_OFF)
    a("s_waitcnt vmcnt(10)")
    for cg in range(5):
        a("ds_read_b64_tr_b16 %s, v11 offset:%d" % (vr(32 + 4 * cg, 2), 2560 + 32 * cg))
        a("ds_read_b64_tr_b16 %s, v11 offset:%d" % (vr(34 + 4 * cg, 2), 32 * cg))
    for cg in range(5):
        a("s_waitcnt lgkmcnt(%d)", 8 - 2 * cg)
        a("buffer_store_dwordx4 %s, v12, s[16:19], s24 offen" % vr(32 + 4 * cg, 4))
        a("s_add_u32 s24, s24, %d", 16 * 4096)
    aWr = 2; aA = 3; aB = 4; aS0 = 5; aS1 = 6; aS2 = 7; aS3 = 8
    a("v_lshl_add_u32 v%d, v0, 2, s6", aWr)
    a("v_and_b32 v10, 31, v0")
    a("v_lshrrev_b32 v11, 5, v0")
    a("v_lshl_add_u32 v12, v11, 4, s6")
    a("v_mul_u32_u24 v13, %d, v10", RS)
    a("v_add_u32 v%d, v12, v13", aB)
    a("v_min_u32 v13, 20, v10")
    a("v_mul_u32_u24 v13, %d, v13", RS)
    a("v_add_u32 v%d, v12, v13", aA)
    a("v_lshlrev_b32 v13, 3, v11")
    a("v_lshl_add_u32 v%d, v10, 4, v13", aS0)
    a("v_cmp_eq_u32 vcc, 0, v11")
    a("v_lshlrev_b32 v13, 3, v10")
    a("v_lshlrev_b32 v14, 2, v10")
    a("v_add_u32 v9, 512, v13")
    a("v_add_u32 v15, 768, v14")
    a("v_cndmask_b32 v%d, v15, v9, vcc", aS1)
    a("v_add_u32 v9, 516, v13")
    a("v_add_u32 v15, 896, v14")
    a("v_cndmask_b32 v%d, v15, v9, vcc", aS2)
    a("v_lshlrev_b32 v13, 8, v11")
    a("v_lshl_add_u32 v%d, v10, 1, v13", aS3)
    a("s_waitcnt vmcnt(5)")
    a.label("K1_SSM_CH")
    for k in range(10):
        a("v_lshlrev_b32 v%d, 16, v%d", IN + k, IN + k)
    L2E = "0x%x" % f2u(LOG2E)
    def bf16r(r):
        a("v_cvt_pk_bf16_f32 v%d, v%d, v%d", r, r, r)
        a("v_and_b32 v%d, 0xffff0000, v%d", r, r)
    for r in (DT, IN, IN + 1):
        a("v_mul_f32 v%d, %s, v%d" % (r, L2E, r))
    for r in (DT, IN, IN + 1):
        a("v_exp_f32 v%d, v%d", r, r)
    a("v_cmp_eq_u32 vcc, 0, v0")
    for r in (DT, IN, IN + 1):
        bf16r(r)
    a("v_cndmask_b32 v%d, 0, v%d, vcc", DSK, DSK)
    for q in range(2):
        a("v_mul_f32 v%d, v%d, v%d", IN + q, IN + q, DT)
        a("v_mul_f32 v%d, 0x%x, v%d", IN + q, f2u(-LOG2E), IN + q)
        a("v_mul_f32 v%d, v%d, v%d", IN + 2 + q, IN + 2 + q, DT)
        a("v_mul_f32 v%d, 0.15915494, v%d", IN + 2 + q, IN + 2 + q)
    a("v_add_f32 v%d, v%d, v%d", DT, DT, DT)
    for r in range(IN + 4, IN + 8):
        a("v_mul_f32 v%d, v%d, v%d", r, r, DT)
    D = 96
    W1, W8, W128, EA, EB, PW, W2, W4, W6, H1, H2, H3, HH = [32 + 2 * i for i in range(13)]
    T0, T1, T2, T3 = 58, 60, 62, 64
    X0 = [66, 68, 70, 72, 74]
    CV = [76, 77, 78, 79, 80, 81, 82, 83]
    cvn = [0, 0, 0, 0]
    def wr(row, r, neg, chain=None):
        if chain is None:
            chain = 0 if row < 16 else 1 if row < 32 else 3 if (row == 40 or row >= 44) else 2
        t = CV[2 * chain + cvn[chain] % 2]; cvn[chain] += 1
        return ["v_cvt_pk_bf16_f32 v%d, v%d, %sv%d" % (t, r, "-" if neg else "", r + 1),
                "ds_write_b32 v%d, v%d offset:%d" % (aWr, t, row * RS)]
    for q in range(2):
        A2 = IN + q; BQ = IN + 2 + q; CR = IN + 4 + q; CI = IN + 6 + q
        def direct(dst, p, t):
            L = []
            if p == 1:
                L += ["v_exp_f32 v%d, v%d" % (t, A2), "v_fract_f32 v%d, v%d" % (t + 1, BQ)]
            else:
                L += ["v_mul_f32 v%d, 0x%x, v%d" % (t, f2u(float(p)), A2), "v_mul_f32 v%d, 0x%x, v%d" % (t + 1, f2u(float(p)), BQ),
                      "v_exp_f32 v%d, v%d" % (t, t), "v_fract_f32 v%d, v%d" % (t + 1, t + 1)]
            L += ["v_cos_f32 v%d, v%d" % (dst, t + 1), "v_sin_f32 v%d, v%d" % (dst + 1, t + 1), "s_nop 0",
                  "v_pk_mul_f32 %s, %s, %s op_sel:[0,0] op_sel_hi:[1,0]" % (vr(dst, 2), vr(dst, 2), vr(t, 2))]
            return L
        for l in interleave(direct(W128, 128, T0), direct(W8, 8, T1), direct(W1, 1, T2)): a(l)
        a("v_mov_b32 v%d, v%d", EA, CR)
        a("v_mov_b32 v%d, v%d", EA + 1, CI)
        for l in interleave(cmul(EB, EA, W128, T0), cmul(H1, W128, W128, T1), cmul(W2, W1, W1, T2)): a(l)
        if q == 1:
            a("s_waitcnt lgkmcnt(0)")
        ca = []; cb = []
        for j in range(16):
            ca += wr(j, EA, True); cb += wr(16 + j, EB, True)
            if j < 15:
                ca += cmul(EA, EA, W8, T0); cb += cmul(EB, EB, W8, T1)
        cp = ["v_mov_b32 v84, 0x3f80", "ds_write_b32 v%d, v84 offset:%d" % (aWr, 32 * RS)]
        cp += wr(33, W1, False) + wr(34, W2, False)
        cp += cmul(PW, W2, W1, T2) + wr(35, PW, False)
        cp += cmul(W4, W2, W2, T2) + wr(36, W4, False)
        cp += cmul(PW, W4, W1, T2) + wr(37, PW, False)
        cp += cmul(W6, W4, W2, T2) + wr(38, W6, False)
        cp += cmul(PW, W6, W1, T2) + wr(39, PW, False)
        cp += cmul(X0[0], H1, W2, T2) + wr(41, X0[0], False)
        cp += cmul(X0[1], H1, W4, T2) + wr(42, X0[1], False)
        cp += cmul(X0[2], H1, W6, T2) + wr(43, X0[2], False)
        ch = wr(40, H1, False)
        ch += cmul(H2, H1, H1, T3) + wr(44, H2, False)
        ch += cmul(H3, H2, H1, T3) + wr(46, H3, False)
        ch += cmul(HH, H2, H2, T3) + wr(48, HH, False)
        for k in range(4):
            ch += cmul(HH, HH, H1, T3) + wr(49 + k, HH, False)
        ch += cmul(X0[3], H2, W4, T3) + wr(45, X0[3], False)
        ch += cmul(X0[4], H3, W4, T3) + wr(47, X0[4], False)
        for l in interleave(ca, cb, cp, ch): a(l)
        a("s_waitcnt lgkmcnt(0)")
        FA = 112; FB = 128
        for half in range(2):
            for st in range(4):
                s_ = half * 4 + st
                a("ds_read_b128 %s, v%d offset:%d" % (vr(FA + 4 * st, 4), aA, 32 * RS + 32 * s_))
                a("ds_read_b128 %s, v%d offset:%d" % (vr(FB + 4 * st, 4), aB, 32 * s_))
            for st in range(4):
                a("s_waitcnt lgkmcnt(%d)", 6 - 2 * st)
                c = "0" if (q == 0 and half == 0 and st == 0) else vr(D, 16)
                a("%s %s, %s, %s, %s" % (MF16, vr(D, 16), vr(FA + 4 * st, 4), vr(FB + 4 * st, 4), c))
    a("s_mul_i32 s24, s7, %d", KT_STRIDE)
    a("s_add_u32 s24, s24, %d", KT_OFF)
    a("s_nop 10")
    a("v_add_f32 v%d, v%d, v%d", D, D, DSK)
    for i in range(6):
        a("v_cvt_pk_bf16_f32 v%d, v%d, v%d", 86 + i, D + 2 * i, D + 2 * i + 1)
    a("buffer_store_dwordx2 v[86:87], v%d, s[16:19], s24 offen", aS0)
    a("buffer_store_dword v88, v%d, s[16:19], s24 offen", aS1)
    a("buffer_store_dword v89, v%d, s[16:19], s24 offen", aS2)
    a("buffer_store_short v90, v%d, s[16:19], s24 offen offset:1024", aS3)
    a("buffer_store_short_d16_hi v90, v%d, s[16:19], s24 offen offset:1088", aS3)
    a("buffer_store_short v91, v%d, s[16:19], s24 offen offset:1152", aS3)
    a("buffer_store_short_d16_hi v91, v%d, s[16:19], s24 offen offset:1216", aS3)
    a("s_cmp_lg_u32 s34, 0")
    a("s_cbranch_scc1 K1_END")
    a("s_cmp_ge_u32 s3, 2")
    a("s_cbranch_scc1 K1_END")
    a("s_mov_b32 s34, 1")
    a("s_add_u32 s7, s7, 8")
    load_params()
    a("s_waitcnt vmcnt(0)")
    a("s_branch K1_SSM_CH")
```

```python
from gen_common import *

K2_LDS = 163840
TILE = 2560

def gen_k2(a):
    name = "k2_attn_kernel"
    kernel_begin(a, name)
    a("s_cmp_ge_u32 s2, 256")
    a("s_cbranch_scc1 K2_END")
    a("s_load_dwordx2 s[4:5], s[0:1], 96")
    a("v_lshrrev_b32 v1, 6, v0")
    a("v_and_b32 v0, 63, v0")
    a("v_readfirstlane_b32 s3, v1")
    a("s_and_b32 s6, s2, 7")
    a("s_lshl_b32 s6, s6, 2")
    a("s_bfe_u32 s7, s2, 0x20003")
    a("s_add_u32 s6, s6, s7")
    a("s_lshr_b32 s7, s2, 5")
    a("s_waitcnt lgkmcnt(0)")
    srd(a, 8, 4, WS_BYTES)
    a("v_lshlrev_b32 v2, 4, v0")
    a("s_cmp_lt_u32 s3, 8")
    a("s_cbranch_scc1 K2_COMPUTE")
    a("s_sub_u32 s3, s3, 8")
    a("s_mul_i32 s12, s6, 163840")
    a("s_add_u32 s12, s12, %d", KV_OFF)
    a("s_lshl_b32 s13, s3, 10")
    a("s_add_u32 s12, s12, s13")
    a("s_mov_b32 m0, s13")
    a("s_nop 0")
    issued = 0
    for k, n in enumerate(SYNC_N):
        while issued < max(ISSUE[k], n):
            a("buffer_load_dwordx4 v2, s[8:11], s12 offen lds")
            a("s_add_u32 m0, m0, 4096")
            a("s_add_u32 s12, s12, 4096")
            issued += 1
        a("s_waitcnt vmcnt(%d)", issued - n)
        a("s_barrier")
    assert issued == 40
    a("s_endpgm")
    a.label("K2_COMPUTE")
    va = VAlloc(3)
    aK2 = va(); aV = va(); aK1 = 2
    T0 = va(); T1 = va(); T2 = va()
    Q1 = va(4); Q2 = va(2); KB = va(2); KA = va(4); V1 = va(4); V2 = va(4); P = va(8)
    CI = va(16); S = [va(16), va(16)]; O = va(16)
    nv = va.n
    a("s_lshl_b32 s7, s7, 3")
    a("s_add_u32 s7, s7, s3")
    a("s_lshl_b32 s12, s6, 6")
    a("s_add_u32 s12, s12, s7")
    a("s_mul_i32 s12, s12, 1280")
    a("v_and_b32 v%d, 31, v0", T0)
    a("v_lshlrev_b32 v%d, 3, v%d", aK2, T0)
    a("v_add_u32 v%d, 1024, v%d", aK2, aK2)
    a("buffer_load_dwordx4 %s, v2, s[8:11], s12 offen" % vr(Q1, 4))
    a("buffer_load_dwordx2 %s, v%d, s[8:11], s12 offen" % (vr(Q2, 2), aK2))
    a("v_lshrrev_b32 v%d, 5, v0", T1)
    a("v_mul_u32_u24 v%d, 320, v%d", T1, T1)
    a("v_lshl_add_u32 v%d, v%d, 4, v%d", aV, T0, T1)
    a("v_add_u32 v%d, 1280, v%d", aV, aV)
    a("s_mov_b32 s14, 0x000fffff")
    a("s_mov_b32 s15, 0x000fffff")
    a("s_mov_b32 s16, 0")
    a("s_mov_b32 s19, %d", LOOP_MASK)
    for i in range(4):
        a("v_mov_b32 v%d, 0x3f803f80", V1 + i)
        a("v_mov_b32 v%d, 0x3f803f80", V2 + i)
    a("v_cmp_gt_u32 vcc, 32, v0")
    a("s_nop 0")
    a("s_waitcnt vmcnt(0)")
    a("v_cndmask_b32 v%d, 0, v%d, vcc", Q2, Q2)
    a("v_cndmask_b32 v%d, 0, v%d, vcc", Q2 + 1, Q2 + 1)
    a("s_barrier")
    def rdK1(off): return "ds_read_b128 %s, v%d offset:%d" % (vr(KA, 4), aK1, off)
    def rdK2(off): return "ds_read_b64 %s, v%d offset:%d" % (vr(KB, 2), aK2, off)
    def rdV(reg, off): return ["s_mov_b64 exec, s[14:15]", "ds_read_b128 %s, v%d offset:%d" % (vr(reg, 4), aV, off), "s_mov_b64 exec, -1"]
    def qk1(s, c): return "%s %s, %s, %s, %s" % (MF16, vr(s, 16), vr(KA, 4), vr(Q1, 4), c)
    def qk2(s): return "%s %s, %s, %s, %s" % (MF8, vr(s, 16), vr(KB, 2), vr(Q2, 2), vr(s, 16))
    def maxred(s, dst, first):
        L = []
        if first:
            L.append("v_max3_f32 v%d, v%d, v%d, v%d" % (dst, s, s + 1, s + 2))
            rest = list(range(3, 16))
        else:
            rest = list(range(16))
        while len(rest) >= 2:
            L.append("v_max3_f32 v%d, v%d, v%d, v%d" % (dst, dst, s + rest[0], s + rest[1])); rest = rest[2:]
        if rest: L.append("v_max_f32 v%d, v%d, v%d" % (dst, dst, s + rest[0]))
        return L
    a(rdK1(0)); a(rdK2(0))
    a("s_waitcnt lgkmcnt(0)")
    a(qk1(S[1], "0")); a(qk2(S[1]))
    a("s_nop 11")
    for l in maxred(S[1], T0, True): a(l)
    a.label("K2_SETMAX")
    a("v_mov_b32 v%d, v%d", T1, T0)
    a("s_nop 1")
    a("v_permlane32_swap_b32 v%d, v%d", T0, T1)
    a("s_nop 1")
    a("v_max_f32 v%d, v%d, v%d", T0, T0, T1)
    for i in range(16):
        a("v_sub_f32 v%d, 0, v%d", CI + i, T0)
    for i in range(16):
        a("v_mov_b32 v%d, 0", O + i)
    for i in range(4):
        a("v_mov_b32 v%d, 0", P + 4 + i)
    a(qk1(S[0], vr(CI, 16))); a(qk2(S[0]))
    a(rdK1(TILE))
    for l in rdV(V2, 640): a(l)
    a(rdK2(TILE))
    for l in rdV(V1, 0): a(l)
    a("s_nop 4")

    def tile(j, jo, barrier_before=False):
        c = S[j & 1]; n = S[(j + 1) & 1]
        e = lambda i: "v_exp_f32 v%d, v%d" % (c + i, c + i)
        cv = lambda i: "v_cvt_pk_bf16_f32 v%d, v%d, v%d" % (P + i, c + 2 * i, c + 2 * i + 1)
        w = "s_waitcnt lgkmcnt(3)"
        L = []
        L += [w, qk1(n, vr(CI, 16))]
        if barrier_before: L += ["s_barrier"]
        L += [rdK1((jo + 2) * TILE), e(0), e(1), e(2), cv(0), e(3)]
        L += [w, "%s %s, %s, %s, %s" % (MF16, vr(O, 16), vr(V2, 4), vr(P + 4, 4), vr(O, 16))] + rdV(V2, jo * TILE + 640)
        L += [e(4), cv(1), e(5), e(6), cv(2)]
        L += [w, qk2(n), rdK2((jo + 2) * TILE), e(7), e(8), cv(3), e(9), e(10), cv(4)]
        L += [w, "%s %s, %s, %s, %s" % (MF16, vr(O, 16), vr(V1, 4), vr(P, 4), vr(O, 16))] + rdV(V1, (jo + 1) * TILE)
        L += [e(11), e(12), cv(5), e(13), e(14), e(15), cv(6), cv(7)]
        return L
    U = 8
    def advance():
        for r in (aK1, aK2, aV):
            a("v_add_u32 v%d, %d, v%d", r, U * TILE, r)
    a("s_mov_b32 s17, 0")
    a("s_cmp_lg_u32 s16, 0")
    a("s_cbranch_scc1 K2_LOOP")
    for j in range(U):
        for l in tile(j, j, barrier_before=(j in PEEL_BAR)): a(l)
    advance()
    a("s_mov_b32 s17, 1")
    a.raw(".p2align 6")
    a.label("K2_LOOP")
    a("s_bitcmp1_b32 s19, s17")
    a("s_cbranch_scc0 K2_NOBAR")
    a("s_barrier")
    a.label("K2_NOBAR")
    for j in range(U):
        for l in tile(j, j): a(l)
    advance()
    a("s_add_u32 s17, s17, 1")
    a("s_cmp_lt_u32 s17, 8")
    a("s_cbranch_scc1 K2_LOOP")
    a("s_waitcnt lgkmcnt(0)")
    a("%s %s, %s, %s, %s" % (MF16, vr(O, 16), vr(V2, 4), vr(P + 4, 4), vr(O, 16)))
    for r in (aK1, aK2, aV):
        a("v_subrev_u32 v%d, %d, v%d", r, 64 * TILE, r)
    a("s_lshl_b32 s12, s7, 5")
    a("s_add_u32 s12, s12, s6")
    a("s_mul_i32 s12, s12, 1280")
    a("s_add_u32 s12, s12, %d", OF_OFF)
    a("s_nop 6")
    a("v_mul_f32 v%d, 0, v%d", T1, O)
    for i in range(1, 13):
        a("v_fmac_f32 v%d, 0, v%d", T1, O + i)
    a("v_rcp_f32 v%d, v%d", T2, O + 12)
    a("v_add_f32 v%d, v%d, v%d", T1, T1, O + 12)
    a("v_cmp_nge_f32 vcc, 0x%x, v%d", f2u(2.0 ** 80), T1)
    a("s_cmp_lg_u32 s16, 0")
    a("s_cbranch_scc1 K2_FIN")
    a("s_cbranch_vccnz K2_FALLBACK")
    a.label("K2_FIN")
    for i in range(12):
        a("v_mul_f32 v%d, v%d, v%d", O + i, O + i, T2)
    for i in range(6):
        a("v_cvt_pk_bf16_f32 v%d, v%d, v%d", P + i, O + 2 * i, O + 2 * i + 1)
    a("buffer_store_dwordx4 %s, v2, s[8:11], s12 offen" % vr(P, 4))
    a("s_mov_b32 exec_hi, 0")
    a("buffer_store_dwordx2 %s, v%d, s[8:11], s12 offen" % (vr(P + 4, 2), aK2))
    a("s_endpgm")
    a.label("K2_FALLBACK")
    a("s_mov_b32 s16, 1")
    a("s_mov_b32 s19, 0")
    a("s_mov_b32 s17, 0")
    a("v_mov_b32 v%d, 0xff800000", T0)
    a.label("K2_MAXLOOP")
    a(rdK1(0)); a(rdK2(0))
    a("s_waitcnt lgkmcnt(0)")
    a(qk1(S[1], "0")); a(qk2(S[1]))
    a("v_add_u32 v%d, %d, v%d", aK1, TILE, aK1)
    a("v_add_u32 v%d, %d, v%d", aK2, TILE, aK2)
    a("s_nop 10")
    for l in maxred(S[1], T0, False): a(l)
    a("s_add_u32 s17, s17, 1")
    a("s_cmp_lt_u32 s17, 64")
    a("s_cbranch_scc1 K2_MAXLOOP")
    a("v_subrev_u32 v%d, %d, v%d", aK1, 64 * TILE, aK1)
    a("v_subrev_u32 v%d, %d, v%d", aK2, 64 * TILE, aK2)
    a(rdK1(0)); a(rdK2(0))
    a("s_waitcnt lgkmcnt(0)")
    a("s_branch K2_SETMAX")
    a.label("K2_END")
    a("s_endpgm")
    kernel_desc(a, name, nv)
    return name

PEEL_BAR = [1, 4]
LOOP_BAR = [1, 2, 4]
def _cover():
    pts = [0] + PEEL_BAR + [8 * i for i in LOOP_BAR] + [64]
    out = []
    for k in range(len(pts) - 1):
        last_tile_read = min(63, pts[k + 1] - 1 + 2)
        nbytes = (last_tile_read + 1) * TILE
        out.append(min(40, -(-nbytes // 4096)))
    return out
SYNC_N = _cover()
LOOP_MASK = sum(1 << i for i in LOOP_BAR)
ISSUE = [8, 16, 28, 40, 40, 40]
```

```python
from gen_common import *

K3_LDS = 81920
NCONV = 160
NPROJ = 320

def gen_k3(a):
    name = "k3_out_kernel"
    kernel_begin(a, name)
    a("s_cmp_ge_u32 s2, %d", NCONV + NPROJ)
    a("s_cbranch_scc1 K3_END")
    a("s_load_dwordx2 s[4:5], s[0:1], 96")
    a("s_load_dwordx2 s[6:7], s[0:1], 80")
    a("s_load_dwordx2 s[20:21], s[0:1], 16")
    a("v_lshrrev_b32 v1, 6, v0")
    a("v_and_b32 v0, 63, v0")
    a("v_readfirstlane_b32 s3, v1")
    a("s_and_b32 s22, s2, 7")
    a("s_lshr_b32 s23, s2, 3")
    a("s_waitcnt lgkmcnt(0)")
    srd(a, 8, 4, WS_BYTES)
    srd(a, 12, 6, 2048 * 1280 * 2)
    srd(a, 16, 20, 640 * 640 * 2)
    a("s_mul_i32 s24, s3, 20480")
    a("s_cmp_lt_u32 s23, 20")
    a("s_cbranch_scc1 K3_CONV")
    a("s_sub_u32 s23, s23, 20")
    a("s_mul_i32 s25, s23, 6554")
    a("s_lshr_b32 s25, s25, 16")
    a("s_mul_i32 s26, s25, 10")
    a("s_sub_u32 s26, s23, s26")
    a("s_lshl_b32 s27, s22, 2")
    a("s_add_u32 s25, s25, s27")
    a("v_lshrrev_b32 v2, 3, v0")
    a("v_and_b32 v3, 7, v0")
    a("v_bfe_u32 v4, v0, 4, 1")
    a("v_lshlrev_b32 v4, 2, v4")
    a("v_xor_b32 v3, v3, v4")
    a("v_mul_u32_u24 v2, 1280, v2")
    a("v_lshl_add_u32 v2, v3, 4, v2")
    a("s_mul_i32 s27, s3, %d", 160 * 1280)
    a("s_lshl_b32 s28, s26, 7")
    a("s_add_u32 s27, s27, s28")
    a("s_mov_b32 m0, s24")
    OFR = 16
    a("v_lshlrev_b32 v5, 4, v0")
    a("v_and_b32 v6, 31, v0")
    a("v_lshrrev_b32 v7, 5, v0")
    a("v_mul_u32_u24 v8, 2560, v7")
    a("v_lshl_add_u32 v8, v6, 3, v8")
    a("s_mul_i32 s28, s25, %d", 2 * 32 * 1280)
    a("s_mul_i32 s29, s3, %d", 8 * 1280)
    a("s_add_u32 s28, s28, s29")
    a("s_add_u32 s28, s28, %d", OF_OFF)
    dma = []
    for i in range(20):
        dma.append(["buffer_load_dwordx4 v2, s[16:19], s27 offen lds", "s_add_u32 m0, m0, 1024", "s_add_u32 s27, s27, %d" % (8 * 1280)])
    ol = []
    for tt in range(2):
        for hh in range(8):
            ol.append(["s_add_u32 s29, s28, %d" % (tt * 32 * 1280 + hh * 1280),
                       "buffer_load_dwordx4 %s, v5, s[8:11], s29 offen" % vr(OFR + 40 * tt + 4 * hh, 4)])
        for H in range(2):
            ol.append(["s_add_u32 s29, s28, %d" % (tt * 32 * 1280 + 4 * H * 1280),
                       "buffer_load_dwordx2 %s, v8, s[8:11], s29 offen offset:1024" % vr(OFR + 40 * tt + 32 + 4 * H, 2),
                       "buffer_load_dwordx2 %s, v8, s[8:11], s29 offen offset:%d" % (vr(OFR + 40 * tt + 34 + 4 * H, 2), 1024 + 1280)])
    for grp in interleave(dma, ol):
        for l in grp: a(l)
    a("v_and_b32 v9, 1, v0")
    a("v_lshlrev_b32 v9, 2, v9")
    a("v_bfe_u32 v10, v0, 4, 1")
    a("v_lshl_add_u32 v9, v10, 1, v9")
    a("v_bfe_u32 v10, v0, 1, 1")
    a("v_add_u32 v9, v9, v10")
    a("v_lshlrev_b32 v9, 3, v9")
    a("v_bfe_u32 v10, v0, 2, 2")
    a("v_bfe_u32 v11, v0, 3, 1")
    a("v_lshl_add_u32 v9, v11, 6, v9")
    a("v_lshl_add_u32 v9, v10, 7, v9")
    a("v_add_u32 v9, s24, v9")
    a("v_lshl_add_u32 v12, v7, 9, v9")
    a("v_xor_b32 v13, 64, v12")
    a("v_mul_u32_u24 v10, %d, v7", 40 * 128)
    a("v_add_u32 v14, v9, v10")
    a("v_xor_b32 v15, 64, v14")
    ACC = 96
    WF = 160
    a("s_waitcnt vmcnt(0)")
    def wreads(ks):
        L = []
        f = WF + 8 * (ks % 4)
        for nt in range(2):
            for z in range(2):
                if ks < 8:
                    off = (20 * ks + 8 * z) * 128; ad = 12 + nt
                else:
                    off = (80 * (ks - 8) + 20 * z + 16) * 128; ad = 14 + nt
                L.append("ds_read_b64_tr_b16 %s, v%d offset:%d" % (vr(f + 4 * nt + 2 * z, 2), ad, off))
        return L
    for ks in range(3):
        for l in wreads(ks): a(l)
    for ks in range(10):
        rem = min(9, ks + 2) - ks
        a("s_waitcnt lgkmcnt(%d)", 4 * rem)
        f = WF + 8 * (ks % 4)
        if ks + 3 < 10:
            for l in wreads(ks + 3): a(l)
        for tt in range(2):
            for nt in range(2):
                acc = vr(ACC + 32 * tt + 16 * nt, 16)
                a("%s %s, %s, %s, %s" % (MF16, acc, vr(f + 4 * nt, 4), vr(OFR + 40 * tt + 4 * ks, 4), "0" if ks == 0 else acc))
    a("v_add_u32 v9, s24, v5")
    a("s_nop 10")
    for i in range(4):
        for q in range(4):
            a("ds_write_b128 v9, %s offset:%d" % (vr(ACC + 16 * i + 4 * q, 4), i * 4096 + q * 1024))
    a("s_lshl_b32 s27, s3, 12")
    a("v_add_u32 v9, s27, v5")
    a("s_waitcnt lgkmcnt(0)")
    a("s_barrier")
    R = 16
    for w in range(4):
        for q in range(4):
            a("ds_read_b128 %s, v9 offset:%d" % (vr(R + 16 * w + 4 * q, 4), w * 20480 + q * 1024))
        if w == 2: a("s_waitcnt lgkmcnt(8)")
    a("s_lshl_b32 s27, s25, 6")
    a("s_lshr_b32 s28, s3, 1")
    a("s_lshl_b32 s28, s28, 5")
    a("s_add_u32 s27, s27, s28")
    a("s_mul_i32 s27, s27, 2560")
    a("s_lshl_b32 s28, s26, 7")
    a("s_add_u32 s27, s27, s28")
    a("s_and_b32 s28, s3, 1")
    a("s_lshl_b32 s28, s28, 6")
    a("s_add_u32 s27, s27, s28")
    a("v_mul_u32_u24 v10, 2560, v6")
    a("v_lshl_add_u32 v10, v7, 5, v10")
    a("s_waitcnt lgkmcnt(0)")
    for i in range(8):
        a("v_pk_add_f32 %s, %s, %s" % (vr(R + 2 * i, 2), vr(R + 2 * i, 2), vr(R + 16 + 2 * i, 2)))
        a("v_pk_add_f32 %s, %s, %s" % (vr(R + 32 + 2 * i, 2), vr(R + 32 + 2 * i, 2), vr(R + 48 + 2 * i, 2)))
    for i in range(8):
        a("v_pk_add_f32 %s, %s, %s" % (vr(R + 2 * i, 2), vr(R + 2 * i, 2), vr(R + 32 + 2 * i, 2)))
    for i in range(8):
        a("v_cvt_pk_bf16_f32 v%d, v%d, v%d", R + 16 + i, R + 2 * i, R + 2 * i + 1)
    a("buffer_store_dwordx4 %s, v10, s[12:15], s27 offen" % vr(R + 16, 4))
    a("buffer_store_dwordx4 %s, v10, s[12:15], s27 offen offset:16" % vr(R + 20, 4))
    a("s_endpgm")

    a.label("K3_CONV")
    KB_ = 0
    UB = 4608 + 512
    a("s_mul_i32 s25, s22, 20")
    a("s_add_u32 s25, s25, s23")
    a("s_lshl_b32 s26, s25, 2")
    a("s_add_u32 s26, s26, s3")
    a("s_mul_i32 s27, s26, %d", KT_STRIDE)
    a("s_add_u32 s27, s27, %d", KT_OFF)
    a("v_lshlrev_b32 v2, 3, v0")
    a("v_lshlrev_b32 v3, 2, v0")
    a("v_lshlrev_b32 v5, 4, v0")
    a("buffer_load_dwordx2 v[16:17], v2, s[8:11], s27 offen")
    a("buffer_load_dwordx2 v[18:19], v3, s[8:11], s27 offen offset:512")
    a("buffer_load_dwordx2 v[20:21], v3, s[8:11], s27 offen offset:768")
    a("buffer_load_dwordx2 v[22:23], v3, s[8:11], s27 offen offset:1024")
    a("s_lshl_b32 s27, s26, 12")
    a("s_add_u32 s27, s27, %d", UP_OFF)
    a("s_add_u32 m0, s24, %d", UB)
    a("s_nop 0")
    for i in range(4):
        a("buffer_load_dwordx4 v5, s[8:11], s27 offen offset:%d lds" % (1024 * i) if i else "buffer_load_dwordx4 v5, s[8:11], s27 offen lds")
    a("v_mov_b32 v24, 0")
    a("v_mov_b32 v25, 0")
    a("v_add_u32 v6, s24, v2")
    a("ds_write_b64 v6, v[24:25] offset:%d", UB - 512)
    a("v_and_b32 v7, 7, v0")
    a("v_lshl_add_u32 v7, v7, 3, s24")
    a("ds_write_b64 v7, v[24:25]")
    a("s_mov_b32 s28, 0x01000100")
    a("s_mov_b32 s29, 0x03020302")
    a("s_mov_b32 s30, 0x05040302")
    a("v_add_u32 v8, s24, v5")
    a("v_lshl_add_u32 v9, v0, 5, s24")
    aU = 10; aK = 11
    a("v_and_b32 v12, 31, v0")
    a("v_lshrrev_b32 v13, 5, v0")
    a("v_lshlrev_b32 v14, 6, v13")
    a("v_lshl_add_u32 v%d, v12, 4, s24", aU)
    a("v_sub_u32 v%d, v%d, v14", aU, aU)
    a("v_bfe_u32 v12, v0, 4, 1")
    a("v_lshl_add_u32 v14, v12, 5, v14")
    a("v_and_b32 v12, 3, v0")
    a("v_bfe_u32 v15, v0, 2, 2")
    a("v_add_u32 v12, v12, v15")
    a("v_lshl_add_u32 v14, v12, 3, v14")
    a("v_add_u32 v%d, s24, v14", aK)
    a("s_waitcnt vmcnt(4)")
    a("ds_write_b64 v6, v[16:17] offset:64")
    a("v_perm_b32 v24, v18, v18, s28")
    a("v_perm_b32 v25, v19, v18, s30")
    a("ds_write_b64 v6, v[24:25] offset:%d", 64 + 512)
    a("v_perm_b32 v28, v20, v20, s28")
    a("v_mov_b32 v29, v20")
    a("v_perm_b32 v30, v20, v20, s29")
    a("v_perm_b32 v31, v21, v21, s28")
    a("ds_write_b128 v8, v[28:31] offset:%d", 64 + 1024)
    a("v_perm_b32 v32, v22, v22, s28")
    a("v_mov_b32 v33, v32")
    a("v_mov_b32 v34, v22")
    a("v_perm_b32 v35, v22, v22, s29")
    a("v_mov_b32 v36, v35")
    a("v_mov_b32 v37, v35")
    a("v_perm_b32 v38, v23, v23, s28")
    a("v_mov_b32 v39, v38")
    a("ds_write_b128 v9, v[32:35] offset:%d", 64 + 2048)
    a("ds_write_b128 v9, v[36:39] offset:%d", 64 + 2048 + 16)
    a("s_waitcnt vmcnt(0) lgkmcnt(0)")
    AU = 16; BK = 48; ACC = 80
    q = []
    def ldA(om, e):
        a("ds_read_b128 %s, v%d offset:%d" % (vr(AU + 4 * om, 4), aU, UB + (8 * om - 2 * e) * 64)); q.append(("A", om))
    def ldB(g, e):
        c2 = 4 * g + e
        for z in range(2):
            a("ds_read_b64_tr_b16 %s, v%d offset:%d" % (vr(BK + 4 * g + 2 * z, 2), aK, 8 + 128 * c2 + 32 * z)); q.append(("B", g))
    def needq(tags):
        last = -1
        for i, t in enumerate(q):
            if t in tags: last = i
        if last >= 0:
            n = len(q) - 1 - last
            a("s_waitcnt lgkmcnt(%d)", min(n, 15))
            del q[:len(q) - min(n, 15)]
    def throttle(k):
        if len(q) + k > 15:
            n = 15 - k
            a("s_waitcnt lgkmcnt(%d)", n); del q[:len(q) - n]
    def arr(lo, hi):
        out = []
        while lo <= hi:
            out.append(lo)
            if hi != lo: out.append(hi)
            lo += 1; hi -= 1
        return out
    ORDER = []
    for k in range(4):
        ORDER += [(k, om) for om in arr(k, 7 - k)]
        ORDER += [(g, k) for g in arr(k, 7 - k)[1:]]
    assert len(ORDER) == 36 and len(set(ORDER)) == 36
    seenA = set(); seenB = set()
    for g, om in ORDER:
        if g not in seenB: throttle(2); ldB(g, 0); seenB.add(g)
        if om not in seenA: throttle(1); ldA(om, 0); seenA.add(om)
    started = set()
    def mf(g, om):
        T = g + om
        needq({("A", om), ("B", g)})
        acc = vr(ACC + 16 * T, 16)
        c = acc if T in started else "0"
        started.add(T)
        a("%s %s, %s, %s, %s" % (MF16, acc, vr(AU + 4 * om, 4), vr(BK + 4 * g, 4), c))
    for e in range(3):
        for i, (g, om) in enumerate(ORDER):
            mf(g, om)
            if all(o != om for _, o in ORDER[i + 1:]):
                throttle(1); ldA(om, e + 1)
            if all(gg != g for gg, _ in ORDER[i + 1:]):
                throttle(2); ldB(g, e + 1)
    TMP = [208, 209, 210, 211]
    YP = 212
    a("v_mov_b32 v228, 0")
    a("v_cmp_eq_u32 vcc, 63, v0")
    a("s_lshl_b32 s27, s3, 1")
    a("v_add_u32 v12, s27, v2")
    YB = 10240
    def epi(T):
        L = []
        for lvl in range(3):
            for g in range(4):
                G = 4 * T + g
                src = ACC + 4 * G + 3 - lvl
                prev = 228 if G == 0 else src - 4
                L.append("v_cndmask_b32 v%d, v%d, v%d, vcc" % (TMP[g], src, prev))
            for g in range(4):
                G = 4 * T + g
                dst = ACC + 4 * G + 2 - lvl
                L.append("v_add_f32_dpp v%d, v%d, v%d wave_ror:1 row_mask:0xf bank_mask:0xf" % (dst, TMP[g], dst))
        for h in range(2):
            G = 4 * T + 2 * h
            r = YP + 2 * T + h
            L.append("v_cvt_pk_bf16_f32 v%d, v%d, v%d" % (r, ACC + 4 * G, ACC + 4 * G + 4))
            for k in range(2):
                GG = G + k
                off = (GG // 8) * 20480 + YB + (GG % 8) * 512
                L.append(("ywrite", r, k, off))
        return L
    a("v_add_u32 v13, %d, v12", 40960)
    def emit(l):
        if isinstance(l, tuple):
            _, r, k, off = l
            ad = 12
            if off >= 40960: off -= 40960; ad = 13
            a("%s v%d, v%d offset:%d" % ("ds_write_b16_d16_hi" if k else "ds_write_b16", ad, r, off)); q.append(("W", 0))
            throttle(1)
        else: a(l)
    pend = []
    for T in range(8):
        for g in range(T, -1, -1):
            mf(g, T - g)
            for l in pend[:6]: emit(l)
            pend = pend[6:]
        if T == 1: pend += ["s_nop 9"]
        if T >= 1:
            pend += epi(T - 1)
    for l in pend: emit(l)
    for l in epi(7): emit(l)
    a("s_waitcnt lgkmcnt(0)")
    a("s_barrier")
    a("v_add_u32 v12, s24, v2")
    for i in range(8):
        a("ds_read_b64 %s, v12 offset:%d" % (vr(16 + 2 * i, 2), YB + i * 512))
    a("v_mul_u32_u24 v13, 2560, v0")
    a("s_mul_i32 s27, s3, %d", 512 * 2560)
    a("s_lshl_b32 s28, s25, 3")
    a("s_add_u32 s27, s27, s28")
    a("s_add_u32 s27, s27, 1280")
    for i in range(8):
        a("s_waitcnt lgkmcnt(%d)", 7 - i)
        a("buffer_store_dwordx2 %s, v13, s[12:15], s27 offen" % vr(16 + 2 * i, 2))
        a("s_add_u32 s27, s27, %d", 64 * 2560)
    a.label("K3_END")
    a("s_endpgm")
    kernel_desc(a, name, 232)
    return name
```

```python
import re, sys
TRANS = ("v_exp_", "v_log_", "v_rcp_", "v_rsq_", "v_sqrt_", "v_sin_", "v_cos_")
def regs(tok):
    tok = tok.strip()
    tok = tok.lstrip("-")
    if tok.startswith("abs(") or tok.startswith("|"):
        tok = tok.replace("abs(", "").replace(")", "").replace("|", "")
    m = re.fullmatch(r"([vsa])(\d+)", tok)
    if m: return {(m.group(1), int(m.group(2)))}
    m = re.fullmatch(r"([vsa])\[(\d+):(\d+)\]", tok)
    if m: return {(m.group(1), i) for i in range(int(m.group(2)), int(m.group(3)) + 1)}
    if tok == "vcc": return {("s", 106), ("s", 107)}
    if tok == "vcc_lo": return {("s", 106)}
    if tok == "vcc_hi": return {("s", 107)}
    if tok == "exec": return {("x", 0)}
    if tok == "m0": return {("m", 0)}
    return set()
class I:
    pass
def parse(text):
    ins = []; labels = {}
    for ln, line in enumerate(text.splitlines(), 1):
        s = line.split(";")[0].strip()
        if not s or s.startswith("."): continue
        if s.endswith(":"):
            labels[s[:-1]] = len(ins); continue
        parts = s.split(None, 1)
        op = parts[0]; rest = parts[1] if len(parts) > 1 else ""
        ops = []; depth = 0; cur = ""
        for ch in rest:
            if ch in "[(": depth += 1
            if ch in "])": depth -= 1
            if ch == "," and depth == 0: ops.append(cur.strip()); cur = ""
            else: cur += ch
        if cur.strip(): ops.append(cur.strip())
        mods = ""
        if ops:
            last = ops[-1].split(None, 1)
            ops[-1] = last[0]
            if len(last) > 1: mods = last[1]
        i = I(); i.op = op; i.ops = ops; i.mods = mods; i.ln = ln; i.text = s
        i.states = 1
        if op == "s_nop": i.states = int(ops[0], 0) + 1
        i.kind = "salu"; i.w = set(); i.r = set()
        if op.startswith("v_mfma"):
            i.kind = "mfma"
            i.D = regs(ops[0]); i.A = regs(ops[1]); i.B = regs(ops[2]); i.C = regs(ops[3])
            i.w = i.D; i.r = i.A | i.B | i.C
            if "32x32x4_2b" in op: i.passes = 16
            elif "32x32" in op: i.passes = 8
            elif "16x16" in op: i.passes = 4
            else: raise Exception("mfma? " + op)
        elif op.startswith("v_"):
            i.kind = "valu"
            i.trans = op.startswith(TRANS)
            i.dpp = "_dpp" in op or "row_" in mods or "wave_" in mods or "quad_perm" in mods
            i.perml = op.startswith("v_permlane")
            i.rdl = op.startswith("v_readlane") or op.startswith("v_readfirstlane")
            nd = 1
            if re.match(r"v_(add|sub|subrev|addc|subb)_co_", op) or op.startswith("v_div_scale") or op.startswith("v_mad_u64"): nd = 2
            for o in ops[:nd]: i.w |= regs(o)
            for o in ops[nd:]: i.r |= regs(o)
            if op.startswith("v_fmac") or op.startswith("v_pk_fmac") or i.perml or i.dpp or "sdwa" in op or op.startswith("v_writelane"): i.r |= regs(ops[0])
            if i.perml: i.w |= regs(ops[1])
            if op.startswith("v_cmpx"): i.w |= {("x", 0)}
        elif op.startswith("ds_"):
            i.kind = "ds"
            if op.startswith("ds_read") or op.startswith("ds_bpermute") or op.startswith("ds_swizzle") or "_rtn" in op:
                i.w = regs(ops[0])
                for o in ops[1:]: i.r |= regs(o)
            else:
                for o in ops: i.r |= regs(o)
        elif op.startswith("buffer_") or op.startswith("global_"):
            i.kind = "vmem"
            i.lds = bool(re.search(r"\blds\b", mods)) or "_lds_" in op
            i.store = "store" in op or "atomic" in op
            if "load" in op and not i.lds:
                i.w = regs(ops[0])
                for o in ops[1:]: i.r |= regs(o)
            else:
                for o in ops: i.r |= regs(o)
            i.wide = i.store and ("x3" in op or "x4" in op)
            if i.store:
                i.data = regs(ops[0]) if op.startswith("buffer_") else regs(ops[1])
        else:
            if ops and not op.startswith(("s_cmp", "s_cbranch", "s_branch", "s_waitcnt", "s_nop", "s_barrier", "s_endpgm", "s_setprio", "s_sleep", "s_bitcmp")):
                i.w = regs(ops[0])
                for o in ops[1:]: i.r |= regs(o)
                if "saveexec" in op: i.w |= {("x", 0)}
            else:
                for o in ops: i.r |= regs(o)
        ins.append(i)
    return ins, labels
def need(p, c):
    n = 0; why = ""
    def up(k, w):
        nonlocal n, why
        if k > n: n = k; why = w
    vw = {r for r in p.w if r[0] in "va"}
    sw = {r for r in p.w if r[0] == "s"}
    if p.kind == "valu":
        if c.kind == "mfma" and vw & c.r: up(2, "valu->mfma")
        if c.kind == "mfma" and ("x", 0) in p.w: up(4, "valu exec->mfma")
        if c.kind == "valu":
            if p.trans and not c.trans and vw & c.r: up(1, "trans->valu")
            if c.dpp and vw & c.r: up(2, "valu->dpp")
            if c.perml and vw & c.r: up(2, "valu->permlane")
            if c.rdl and vw & c.r: up(1, "valu->readlane")
            if sw & c.r: up(2, "valu sgpr->valu")
            if c.op.startswith("v_cndmask") and len(c.ops) == 3 and sw & {("s",106)}: up(2, "vcc->cndmask")
            if ("opsel" in p.mods or "sdwa" in p.op) and vw & c.r: up(1, "sdwa->valu")
            if ("x", 0) in p.w and c.dpp: up(5, "exec->dpp")
            if ("x", 0) in p.w and (c.rdl or c.perml): up(4, "exec->rdl")
        if c.kind == "vmem" and sw & c.r: up(5, "valu sgpr->vmem")
    if p.kind == "mfma":
        t = {2: 5, 4: 8, 8: 12, 16: 20}[p.passes]
        if c.kind == "mfma":
            if p.D & (c.A | c.B): up(t, "mfma D->mfma AB")
            if p.D & c.C:
                if p.D == c.C and p.passes == c.passes: pass
                else: up(t - 2, "mfma D->mfma C partial")
            elif p.D & c.D: up(t - 2, "mfma D->mfma D (WAW, conservative)")
        elif c.kind in ("valu", "ds", "vmem"):
            if p.D & (c.r | c.w): up(t, "mfma D->" + c.kind)
        if c.kind == "valu" and p.C & c.w: up({2: 1, 4: 3, 8: 7, 16: 15}[p.passes], "mfma C WAR")
    if p.kind == "vmem" and getattr(p, "wide", False):
        if p.data & c.w: up(2 if c.kind == "valu" else 1, "store data WAR")
    if p.kind == "salu" and ("m", 0) in p.w and c.kind == "vmem" and c.lds: up(1, "m0->lds dma")
    return n, why
def check(text):
    ins, labels = parse(text)
    preds = [[] for _ in ins]
    for k, i in enumerate(ins):
        if k + 1 < len(ins) and i.op not in ("s_branch", "s_endpgm", "s_setpc_b64"):
            preds[k + 1].append(k)
        if i.op.startswith("s_branch") or i.op.startswith("s_cbranch"):
            t = labels[i.ops[0]]
            if t < len(ins): preds[t].append(k)
    errs = []
    for k, c in enumerate(ins):
        if c.kind == "salu": continue
        seen = {}
        st = [(p, 0) for p in preds[k]]
        while st:
            p, d = st.pop()
            if d > 20: continue
            if p in seen and seen[p] <= d: continue
            seen[p] = d
            n, why = need(ins[p], c)
            if n > d:
                errs.append("line %d -> %d: need %d have %d (%s)\n    %s\n    %s" % (ins[p].ln, c.ln, n, d, why, ins[p].text, c.text))
            for q in preds[p]: st.append((q, d + ins[p].states))
    return errs
if __name__ == "__main__":
    e = check(open(sys.argv[1]).read())
    for x in e: print(x)
    print("hazards:", len(e))
```

```python
import sys
sys.path.insert(0, "dev")
from gen_common import *
import gen_k1, gen_k2, gen_k3, hazard
ref = open("concat_heads__mha_block__ssm_conv_s4d__prompt.s.ref").read().splitlines()
hdr = [l for l in ref if l.startswith(";") and "@launch" not in l]
a = Asm()
for l in hdr: a.raw(l)
a.raw("; @launch kernel=k1_qkv_kernel grid=(256,1,1) block=(512,1,1) lds=%d" % gen_k1.K1_LDS)
a.raw("; @launch kernel=k2_attn_kernel grid=(256,1,1) block=(768,1,1) lds=%d" % gen_k2.K2_LDS)
a.raw("; @launch kernel=k3_out_kernel grid=(%d,1,1) block=(256,1,1) lds=%d" % (gen_k3.NCONV + gen_k3.NPROJ, gen_k3.K3_LDS))
a.raw('.amdgcn_target "amdgcn-amd-amdhsa--gfx950"')
gen_k1.gen_k1(a)
gen_k2.gen_k2(a)
gen_k3.gen_k3(a)
t = a.text()
out = sys.argv[1] if len(sys.argv) > 1 else "concat_heads__mha_block__ssm_conv_s4d__prompt.s"
open(out, "w").write(t)
e = hazard.check(t)
for x in e: print(x)
print("hazards:", len(e), "lines:", len(t.splitlines()))
```
